```python
import torch

def _softmax(x, axis=-1):
    return torch.softmax(x, dim=axis)
def _gelu(x):
    return torch.nn.functional.gelu(x, approximate="tanh")
def _silu(x):
    return torch.nn.functional.silu(x)
def _sigmoid(x):
    return torch.sigmoid(x)
def _layernorm(x, axis=-1, eps=1e-5):
    m = x.mean(dim=axis, keepdim=True)
    v = x.var(dim=axis, keepdim=True, unbiased=False)
    return (x - m) / torch.sqrt(v + eps)
def _scatter_add(tgt, idx, src, axis=0):
    return tgt.clone().index_add_(axis, idx, src)
def _segment_sum(src, seg, n):
    out = torch.zeros((n,) + src.shape[1:], dtype=src.dtype)
    return out.index_add_(0, seg, src)
def _pad(x, pw):
    flat = tuple(v for pair in reversed(pw) for v in pair)
    return torch.nn.functional.pad(x, flat)

kernel_name = 'standalone__mha_softmax__near_ridge'

def setup_inputs():

    _w = (lambda a: (lambda t: t.to(torch.bfloat16) if t.is_floating_point() else t)(torch.as_tensor(a)))
    B, H, Sq, Sk, D = 8, 32, 368, 512, 128
    return {
        "q": _w((lambda *s: torch.randn(*s, dtype=torch.bfloat16) * 0.8)(B, H, Sq, D)),
        "k": _w((lambda *s: torch.randn(*s, dtype=torch.bfloat16) * 0.8)(B, H, Sk, D)),
        "v": _w((lambda *s: torch.randn(*s, dtype=torch.bfloat16) * 0.05)(B, H, Sk, D)),
    }

def reference(q, k, v):
    scale = q.shape[-1] ** -0.5
    scores = torch.einsum("bhqd,bhkd->bhqk", q, k) * scale
    p = _softmax(scores, axis=-1)
    return torch.einsum("bhqk,bhkd->bhqd", p, v)
```

```python
import sys, struct, math, argparse

NAME = "standalone__mha_softmax__near_ridge"

def f2u(x):
    return struct.unpack("<I", struct.pack("<f", x))[0]

SQ, SK, D = 368, 512, 128
QBYTES = SQ * 256
KBYTES = SK * 256
KP = 1040
VP = 1088
KT = 16 * KP
VT = 16 * VP
SLOT = KT + VT
NSLOT = 4
LDS = SLOT * NSLOT
NT = 8

sQ, sK, sV, sO = 4, 8, 12, 16
sW = 20
sC = 21
sI = 22
sG = 23
sDK = 24
sDV = 25
sSL = 26
sT0, sT1, sT2, sT3 = 28, 29, 30, 31
sJ1, sJ2 = 32, 33
sKA = 36
sTHR = 44
sDBG = 48
sTM = 52
vDMA = 1
vKA = 2
vVA = 3
vNM = 4
vL = 7
vKB = 10
vVB = 11
vQO = 12
vT = 16
vS = [32, 48]
vO = 64
aQ = 0
aK = 96
aV = 128
NAGPR = 160

class Gen:
    def __init__(self, opt):
        self.o = []
        self.opt = opt
    def e(self, s):
        self.o.append("    " + s)
    def lab(self, s):
        self.o.append(s + ":")
    def c(self, s):
        self.o.append("    ; " + s)

def vr(b, n):
    return f"v[{b}:{b+n-1}]"
def ar(b, n):
    return f"a[{b}:{b+n-1}]"
def sr(b, n):
    return f"s[{b}:{b+n-1}]"

def qk_mfma(buf, j, s):
    d = vr(buf, 16)
    c = "0" if s == 0 else d
    return f"v_mfma_f32_32x32x16_bf16 {d}, {ar(aK+4*s,4)}, {ar(aQ+32*j+4*s,4)}, {c}"

def pv_mfma(buf, j, k):
    u, t = k >> 2, k & 3
    d = vr(vO + 64*j + 16*t, 16)
    return f"v_mfma_f32_32x32x16_bf16 {d}, {ar(aV+4*k,4)}, {vr(buf+8*u,4)}, {d}"

def k_read(f, s):
    return f"ds_read_b128 {ar(aK+4*s,4)}, v{vKA} offset:{f*512+32*s}"

def v_read(f, k, w):
    u, t = k >> 2, k & 3
    return f"ds_read_b64_tr_b16 {ar(aV+4*k+2*w,2)}, v{vVA} offset:{w*8*VP+(2*f+u)*256+64*t}"

def sm_ops(buf, j):
    F = lambda e: f"v_fma_f32 v{buf+e}, v{buf+e}, s{sC}, v{vNM+j}"
    E = lambda e: f"v_exp_f32 v{buf+e}, v{buf+e}"
    A = lambda e: f"v_add_f32 v{vL+j}, v{vL+j}, v{buf+e}"
    def C(k):
        dst = buf + (k if k < 4 else 8 + (k - 4))
        return f"v_cvt_pk_bf16_f32 v{dst}, v{buf+2*k}, v{buf+2*k+1}"
    bundles = []
    for b in range(18):
        ops = []
        if b < 16: ops.append(("F", b, F(b)))
        if 0 <= b-1 < 16: ops.append(("E", b-1, E(b-1)))
        if 0 <= b-2 < 16:
            ops.append(("A", b-2, A(b-2)))
            if (b-2) & 1: ops.append(("C", (b-2) >> 1, C((b-2) >> 1)))
        bundles.append(ops)
    return bundles

def dma(g, srd, mbase, k, pstride, nt):
    extra = " nt" if nt else ""
    return [f"s_add_u32 m0, s{mbase}, {(pstride-1024)*k}",
            f"buffer_load_dwordx4 v{vDMA}, {sr(srd,4)}, s{sG} offen offset:{1024*k}{extra} lds"]

def build(opt):
    g = Gen(opt)
    e = g.e
    nt = opt.nt
    hdr = open("cdna_kernels/" + NAME + ".s.ref").read().splitlines()
    for l in hdr[:9]:
        g.o.append(l)
    g.o.append(f"; @launch grid=(256,1,1) block=(256,1,1) lds={LDS}")
    g.o.append('.amdgcn_target "amdgcn-amd-amdhsa--gfx950"')
    g.o.append(".text")
    g.o.append(f".globl {NAME}_kernel")
    g.o.append(".p2align 8")
    g.o.append(f".type {NAME}_kernel,@function")
    g.lab(f"{NAME}_kernel")
    e("s_cmp_ge_u32 s2, 256")
    e("s_cbranch_scc1 L_end")
    e(f"s_load_dwordx8 {sr(sKA,8)}, s[0:1], 0")
    if opt.stamp:
        e(f"s_load_dwordx2 {sr(sDBG,2)}, s[0:1], 40")
        e(f"s_memtime {sr(sTM,2)}")
    e("v_lshrrev_b32 v16, 6, v0")
    e("v_and_b32 v17, 63, v0")
    e(f"v_readfirstlane_b32 s{sW}, v16")
    e("v_lshlrev_b32 v18, 12, v16")
    e(f"v_lshl_add_u32 v{vDMA}, v17, 4, v18")
    e(f"s_mul_i32 s{sT0}, s2, {QBYTES}")
    e(f"s_lshl_b32 s{sT1}, s2, 17")
    e(f"s_mul_i32 s{sDK}, s{sW}, {4*KP}")
    e(f"s_mul_i32 s{sDV}, s{sW}, {4*VP}")
    e(f"s_add_u32 s{sDV}, s{sDV}, {KT}")
    e(f"s_mov_b32 s{sG}, 0")
    e(f"s_mov_b32 s{sK+2}, {KBYTES}")
    e(f"s_mov_b32 s{sK+3}, 0x20000")
    e(f"s_mov_b32 s{sV+2}, {KBYTES}")
    e(f"s_mov_b32 s{sV+3}, 0x20000")
    e(f"s_mov_b32 s{sQ+2}, {QBYTES}")
    e(f"s_mov_b32 s{sQ+3}, 0x20000")
    e(f"s_mov_b32 s{sO+2}, {QBYTES}")
    e(f"s_mov_b32 s{sO+3}, 0x20000")
    e(f"s_movk_i32 s{sJ1}, 8192")
    e(f"s_movk_i32 s{sJ2}, 16384")
    e("v_and_b32 v19, 31, v0")
    e("v_bfe_u32 v20, v0, 5, 1")
    e("v_mul_u32_u24 v21, 96, v16")
    e("v_add_u32 v21, v21, v19")
    e("v_lshlrev_b32 v21, 8, v21")
    e(f"v_lshl_add_u32 v{vQO}, v20, 4, v21")
    e("s_waitcnt lgkmcnt(0)")
    e(f"s_add_u32 s{sK}, s{sKA+2}, s{sT1}")
    e(f"s_addc_u32 s{sK+1}, s{sKA+3}, 0")
    e(f"s_add_u32 s{sQ}, s{sKA}, s{sT0}")
    e(f"s_addc_u32 s{sQ+1}, s{sKA+1}, 0")
    e(f"s_add_u32 s{sV}, s{sKA+4}, s{sT1}")
    e(f"s_addc_u32 s{sV+1}, s{sKA+5}, 0")
    e(f"s_add_u32 s{sO}, s{sKA+6}, s{sT0}")
    e(f"s_addc_u32 s{sO+1}, s{sKA+7}, 0")
    def dma_tile_k():
        for k in range(4):
            a, b = dma(g, sK, sDK, k, KP, nt)
            e(a); e("s_nop 0"); e(b)
    def dma_tile_v():
        for k in range(4):
            a, b = dma(g, sV, sDV, k, VP, nt)
            e(a); e("s_nop 0"); e(b)
    def dma_advance():
        e(f"s_add_u32 s{sDK}, s{sDK}, {SLOT}")
        e(f"s_add_u32 s{sDV}, s{sDV}, {SLOT}")
        e(f"s_add_u32 s{sG}, s{sG}, 16384")
    dma_tile_k()
    qnt = " nt" if opt.qnt else ""
    for j in range(3):
        so = ["0", f"s{sJ1}", f"s{sJ2}"][j]
        for s in range(8):
            e(f"buffer_load_dwordx4 {ar(aQ+32*j+4*s,4)}, v{vQO}, {sr(sQ,4)}, {so} offen offset:{32*s}{qnt}")
    dma_tile_v()
    for t in range(1, 4):
        dma_advance()
        dma_tile_k()
        dma_tile_v()
    e(f"s_sub_u32 s{sDK}, s{sDK}, {3*SLOT}")
    e(f"s_sub_u32 s{sDV}, s{sDV}, {3*SLOT}")
    e(f"s_add_u32 s{sG}, s{sG}, 16384")
    if opt.stamp:
        e(f"s_memtime {sr(sTM+2,2)}")
    e("v_and_b32 v21, 15, v0")
    e(f"v_mul_u32_u24 v22, {KP}, v21")
    e("v_bfe_u32 v23, v0, 4, 1")
    e("v_lshl_add_u32 v22, v23, 8, v22")
    e(f"v_lshl_add_u32 v{vKB}, v20, 4, v22")
    e("v_bfe_u32 v24, v0, 2, 2")
    e("v_lshl_add_u32 v24, v20, 2, v24")
    e(f"v_mul_u32_u24 v24, {VP}, v24")
    e("v_and_b32 v25, 1, v0")
    e("v_lshl_add_u32 v24, v25, 4, v24")
    e("v_lshl_add_u32 v24, v23, 5, v24")
    e("v_bfe_u32 v25, v0, 1, 1")
    e("v_lshl_add_u32 v24, v25, 3, v24")
    e(f"v_add_u32 v{vVB}, {KT}, v24")
    e(f"v_mov_b32 v{vKA}, v{vKB}")
    e(f"v_mov_b32 v{vVA}, v{vVB}")
    e(f"s_mov_b32 s{sC}, 0x{f2u(math.log2(math.e)/math.sqrt(D)):08x}")
    e(f"s_mov_b32 s{sI}, 0")
    e(f"s_mov_b32 s{sSL}, 0")
    for r in range(192):
        e(f"v_mov_b32 v{vO+r}, 0")
    for r in range(32):
        e(f"v_accvgpr_write_b32 a{aV+r}, 0")
    for j in range(3):
        e(f"v_mov_b32 v{vL+j}, 0")
    e("s_waitcnt vmcnt(24)")
    e("s_barrier")
    if opt.stamp:
        e(f"s_memtime {sr(sTM+4,2)}")
    for s in range(8):
        e(k_read(0, s))
    e("s_waitcnt lgkmcnt(0)")
    bufs = [vS[0], vS[1], vT]
    for j in range(3):
        for s in range(8):
            e(qk_mfma(bufs[j], j, s))
    e("s_nop 7")
    e("s_nop 7")
    for j in range(3):
        b = bufs[j]
        m = vNM + j
        e(f"v_max3_f32 v{m}, v{b}, v{b+1}, v{b+2}")
        for r in range(3, 15, 2):
            e(f"v_max3_f32 v{m}, v{m}, v{b+r}, v{b+r+1}")
        e(f"v_max_f32 v{m}, v{m}, v{b+15}")
    for j in range(3):
        e(f"v_mov_b32 v{13+j}, v{vNM+j}")
    e("s_nop 1")
    for j in range(3):
        e(f"v_permlane32_swap_b32 v{13+j}, v{vNM+j}")
    e("s_nop 1")
    for j in range(3):
        e(f"v_max_f32 v{vNM+j}, v{vNM+j}, v{13+j}")
    for j in range(3):
        e(f"v_mul_f32 v{vNM+j}, s{sC}, v{vNM+j}")
    for j in range(3):
        e(f"v_sub_f32 v{vNM+j}, 0, v{vNM+j}")

    groups = [("QK",0,0,0),("PV",1,2,1),("QK",0,1,1),("PV",0,0,0),("QK",0,2,0),("PV",0,1,1),
              ("QK",1,0,1),("PV",0,2,0),("QK",1,1,0),("PV",1,0,1),("QK",1,2,1),("PV",1,1,0)]
    NS = 96
    pre = [[] for _ in range(NS)]
    post = [[] for _ in range(NS)]
    mf = []
    for gi, (kind, f, j, b) in enumerate(groups):
        for s in range(8):
            mf.append(qk_mfma(vS[b], j, s) if kind == "QK" else pv_mfma(vS[b], j, s))
    SM0 = opt.sm0
    wrapped = []
    done_before = []
    smops = [[] for _ in range(NS)]
    for gi, (kind, f, j, b) in enumerate(groups):
        if kind != "QK": continue
        bund = sm_ops(vS[b], j)
        for bi, ops in enumerate(bund):
            slot = gi*8 + 8 + SM0 + bi
            for op in ops:
                if slot >= NS:
                    wrapped.append((slot - NS, op))
                elif gi == 10:
                    done_before.append(op)
                smops[slot % NS].append(op)
    prio = {"A": 0, "C": 1, "F": 2, "E": 3}
    for sl in range(NS):
        for op in sorted(smops[sl], key=lambda o: prio[o[0]]):
            post[sl].append(op[2])
    wrapped.sort(key=lambda x: (x[0], prio[x[1][0]]))
    for p in range(16):
        post[8 + p].append(v_read(0, p >> 1, p & 1))
        post[56 + p].append(v_read(1, p >> 1, p & 1))
    for s in range(8):
        post[32 + s].append(k_read(1, s))
        post[80 + s].append(k_read(0, s))
    pre[0].append("s_waitcnt lgkmcnt(0)")
    pre[24].append("s_waitcnt lgkmcnt(8)")
    pre[28].append("s_waitcnt lgkmcnt(0)")
    pre[48].append("s_waitcnt lgkmcnt(0)")
    pre[72].append("s_waitcnt lgkmcnt(8)")
    pre[76].append("s_waitcnt lgkmcnt(0)")
    post[73] += [f"s_add_u32 s{sSL}, s{sSL}, {SLOT}", f"s_cmp_eq_u32 s{sSL}, {LDS}"]
    post[74] += [f"s_cselect_b32 s{sSL}, 0, s{sSL}"]
    post[75] += [f"v_add_u32 v{vKA}, s{sSL}, v{vKB}"]
    post[76] += [f"v_add_u32 v{vVA}, s{sSL}, v{vVB}"]
    post[78] += [f"s_cmp_gt_u32 s{sI}, 4", "s_cbranch_scc1 L_wtail", "s_waitcnt vmcnt(16)", "L_wback:", "s_barrier"]
    post[79] += [f"s_cmp_lt_u32 s{sI}, 4", "s_cselect_b64 vcc, -1, 0"]
    for k in range(8):
        srd, mb, ps = (sK, sDK, KP) if k < 4 else (sV, sDV, VP)
        a, b = dma(g, srd, mb, k & 3, ps, nt)
        post[88 + k] = [a] + post[88 + k] + [f"s_cbranch_vccz L_nodma{k}", b, f"L_nodma{k}:"]
    post[95] += [f"s_add_u32 s{sDK}, s{sDK}, {SLOT}", f"s_add_u32 s{sDV}, s{sDV}, {SLOT}",
                 f"s_add_u32 s{sG}, s{sG}, 16384",
                 f"s_add_u32 s{sI}, s{sI}, 1", f"s_cmp_lt_u32 s{sI}, {NT}", "s_cbranch_scc1 L_loop"]

    expd = {op[1] for op in done_before if op[0] == "E"}
    for r in range(16):
        e(f"v_mov_b32 v{vS[1]+r}, {'0' if r in expd else '0xff800000'}")
    if opt.stamp:
        e(f"s_memtime {sr(sTM+6,2)}")
    e("s_nop 1")
    g.o.append(".p2align 6")
    g.lab("L_loop")
    def emit(s):
        if s.endswith(":"): g.lab(s[:-1])
        else: e(s)
    for sl in range(NS):
        if sl % 8 == 0:
            g.c(f"G{sl//8} {groups[sl//8]}")
        for s in pre[sl]: emit(s)
        e(mf[sl])
        for s in post[sl]: emit(s)
    if opt.stamp:
        e(f"s_memtime {sr(sTM+8,2)}")
    g.c("tail: rest of softmax(47), PV(47)")
    for rel, op in wrapped:
        e(op[2])
        if op[0] == "E": e("s_nop 0")
    e("s_nop 1")
    for k in range(8):
        e(pv_mfma(vS[1], 2, k))
    for j in range(3):
        e(f"v_mov_b32 v{13+j}, v{vL+j}")
    e("s_nop 1")
    for j in range(3):
        e(f"v_permlane32_swap_b32 v{13+j}, v{vL+j}")
    e("s_nop 1")
    for j in range(3):
        e(f"v_add_f32 v{vL+j}, v{vL+j}, v{13+j}")
    for j in range(3):
        e(f"v_rcp_f32 v{vL+j}, v{vL+j}")
    e("s_nop 7")
    snt = " nt" if opt.snt else ""
    for j in range(3):
        so = ["0", f"s{sJ1}", f"s{sJ2}"][j]
        for t in range(4):
            for w in range(2):
                b = vO + 64*j + 16*t + 8*w
                for r in range(8):
                    e(f"v_mul_f32 v{b+r}, v{b+r}, v{vL+j}")
                for k in range(4):
                    e(f"v_cvt_pk_bf16_f32 v{b+k}, v{b+2*k}, v{b+2*k+1}")
                e(f"buffer_store_dwordx4 {vr(b,4)}, v{vQO}, {sr(sO,4)}, {so} offen offset:{64*t+32*w}{snt}")
    if opt.stamp:
        e(f"s_memtime {sr(sTM+10,2)}")
        e("s_waitcnt vmcnt(0)")
        e(f"s_memtime {sr(sTM+12,2)}")
        e(f"s_memrealtime {sr(sTM+14,2)}")
        e(f"s_mov_b32 s{sDBG+2}, 0x100000")
        e(f"s_mov_b32 s{sDBG+3}, 0x20000")
        e("s_waitcnt lgkmcnt(0)")
        e(f"s_lshl_b32 s{sT0}, s2, 2")
        e(f"s_add_u32 s{sT0}, s{sT0}, s{sW}")
        e(f"s_lshl_b32 s{sT0}, s{sT0}, 6")
        e("v_mov_b32 v16, 0")
        for r in range(16):
            e(f"v_mov_b32 v{20+r}, s{sTM+r}")
        e("s_mov_b64 exec, 1")
        for r in range(4):
            e(f"buffer_store_dwordx4 {vr(20+4*r,4)}, v16, {sr(sDBG,4)}, s{sT0} offen offset:{16*r}")
    g.lab("L_end")
    e("s_endpgm")
    g.lab("L_wtail")
    e(f"s_cmp_eq_u32 s{sI}, 5")
    e("s_cbranch_scc1 L_w5")
    e("s_waitcnt vmcnt(0)")
    e("s_branch L_wback")
    g.lab("L_w5")
    e("s_waitcnt vmcnt(8)")
    e("s_branch L_wback")
    g.o.append('.section .rodata,"a"')
    g.o.append(".p2align 6")
    g.o.append(f".amdhsa_kernel {NAME}_kernel")
    g.o.append(f"  .amdhsa_next_free_vgpr {256+NAGPR}")
    g.o.append("  .amdhsa_next_free_sgpr 96")
    g.o.append("  .amdhsa_accum_offset 256")
    g.o.append("  .amdhsa_group_segment_fixed_size 0")
    g.o.append("  .amdhsa_kernarg_size 48")
    g.o.append("  .amdhsa_user_sgpr_count 2")
    g.o.append("  .amdhsa_user_sgpr_kernarg_segment_ptr 1")
    g.o.append("  .amdhsa_system_sgpr_workgroup_id_x 1")
    g.o.append(".end_amdhsa_kernel")
    return "\n".join(g.o) + "\n"

if __name__ == "__main__":
    ap = argparse.ArgumentParser()
    ap.add_argument("-o", default="cdna_kernels/" + NAME + ".s")
    ap.add_argument("--nt", type=int, default=0)
    ap.add_argument("--qnt", type=int, default=0)
    ap.add_argument("--snt", type=int, default=0)
    ap.add_argument("--stamp", type=int, default=0)
    ap.add_argument("--sm0", type=int, default=2)
    opt = ap.parse_args()
    open(opt.o, "w").write(build(opt))
```
